```python
import torch

def _softmax(x, axis=-1):
    return torch.softmax(x, dim=axis)
def _gelu(x):
    return torch.nn.functional.gelu(x, approximate="tanh")
def _silu(x):
    return torch.nn.functional.silu(x)
def _sigmoid(x):
    return torch.sigmoid(x)
def _layernorm(x, axis=-1, eps=1e-5):
    m = x.mean(dim=axis, keepdim=True)
    v = x.var(dim=axis, keepdim=True, unbiased=False)
    return (x - m) / torch.sqrt(v + eps)
def _scatter_add(tgt, idx, src, axis=0):
    return tgt.clone().index_add_(axis, idx, src)
def _segment_sum(src, seg, n):
    out = torch.zeros((n,) + src.shape[1:], dtype=src.dtype)
    return out.index_add_(0, seg, src)
def _pad(x, pw):
    flat = tuple(v for pair in reversed(pw) for v in pair)
    return torch.nn.functional.pad(x, flat)

kernel_name = 'standalone__paged_block_table_kv_pagedattention__sampling'

def setup_inputs():

    _w = (lambda a: (lambda t: t.to(torch.bfloat16) if t.is_floating_point() else t)(torch.as_tensor(a)))
    B, Hq, Hkv, Sq, Skv, D = 16, 32, 16, 16, 4096, 128
    bs = 16
    nbps = max(1, Skv // bs)
    num_phys = B * nbps + 4
    bt = torch.randperm(num_phys)[: B * nbps].reshape(B, nbps).to(torch.int64)
    cl = (nbps * bs - (torch.arange(1, B + 1, dtype=torch.int64) * 2654435761) % max(1, nbps * bs // 2)).to(torch.int64)
    return {
        "q": _w((lambda *s: torch.randn(*s, dtype=torch.bfloat16) * 0.8)(B, Hq, Sq, D)),
        "k_cache": _w((lambda *s: torch.randn(*s, dtype=torch.bfloat16) * 0.8)(num_phys, bs, Hkv, D)),
        "v_cache": _w((lambda *s: torch.randn(*s, dtype=torch.bfloat16) * 0.05)(num_phys, bs, Hkv, D)),
        "block_table": _w(bt),
        "context_lens": _w(cl),
    }

def reference(q, k_cache, v_cache, block_table, context_lens):
    B, Hq, Sq, D = q.shape
    bs = k_cache.shape[1]
    Hkv = k_cache.shape[2]
    nbps = block_table.shape[1]
    Skv = nbps * bs
    bt = block_table.reshape(-1)
    k = (lambda x, *d: x.permute(*d))(k_cache[bt].reshape(B, Skv, Hkv, D), 0, 2, 1, 3)
    v = (lambda x, *d: x.permute(*d))(v_cache[bt].reshape(B, Skv, Hkv, D), 0, 2, 1, 3)
    g = Hq // Hkv
    qg = q.reshape(B, Hkv, g, Sq, D)
    scores = torch.einsum("bhgqd,bhkd->bhgqk", qg, k) * (D ** -0.5)
    pos = torch.arange(Skv)
    msk = pos[None, :] < context_lens[:, None]
    scores = torch.where(msk[:, None, None, None, :], scores, -1e9)
    p = _softmax(scores, axis=-1)
    out = torch.einsum("bhgqk,bhkd->bhgqd", p, v)
    return out.reshape(B, Hq, Sq, D)
```

```python
import sys, math, struct
KN = 'standalone__paged_block_table_kv_pagedattention__sampling_kernel'
KV_BYTES = 4100 * 65536
HEADER = open('standalone__paged_block_table_kv_pagedattention__sampling.s.ref').read().split('; Override launch')[0]

def f32bits(x):
    return struct.unpack('<I', struct.pack('<f', x))[0]

class Gen:
    def __init__(self):
        self.L = []
        self.nv = 0
    def A(self, s):
        self.L.append('    ' + s)
    def lab(self, s):
        self.L.append(s + ':')
    def C(self, s):
        self.L.append('    ; ' + s)
    def valloc(self, n, align=1):
        self.nv = (self.nv + align - 1) // align * align
        r = self.nv
        self.nv += n
        return r

def vr(a, n):
    return f'v[{a}:{a+n-1}]'

def gen(CAP=6, stamp=False, first_burst=16):
    g = Gen(); A = g.A; C = g.C
    NW = 4
    RING = 32768
    MAIL = NW * RING
    LDS = MAIL + 2048
    sQ, sK, sV, sBT, sCTX, sOUT, sDBG, sWS = 4, 6, 8, 10, 12, 14, 16, 18
    SRD_K, SRD_V, SRD_Q, SRD_O, SRD_BT, SRD_WS = 20, 24, 28, 32, 36, 40
    sB, sH, sW, sC, sRING, sNEXT, sK1, sREM, sP0, sP1, sVC, sT0, sT1, sT2, sCTXV, sNP = range(52, 68)
    sST0 = 68
    def srd(x): return f's[{x}:{x+3}]'
    g.valloc(1)
    vT = g.valloc(7)
    LIST0 = g.valloc(1); LIST1 = g.valloc(1); LISTV = g.valloc(1)
    V4U = g.valloc(1)
    VOFF = g.valloc(4)
    AK = g.valloc(4); AV = g.valloc(8)
    MRUN, L0, L1, M0B, M1B, T0, T1, Y, AA, ALPHA, A0B, A1B = [g.valloc(1) for _ in range(12)]
    Q = g.valloc(32, 4)
    O = g.valloc(64, 4)
    KF = g.valloc(32, 4)
    VF = g.valloc(16, 4)
    S = g.valloc(16, 4)
    P = g.valloc(8, 4)
    def q_(gg, s): return Q + (gg * 4 + s) * 4
    def o_(gg, j): return O + (gg * 8 + j) * 4
    def kf_(p, s): return KF + (p * 4 + s) * 4
    def s_(p, gg): return S + (p * 2 + gg) * 4
    def p_(gg): return P + gg * 4
    def vf_(j): return VF + (j % 4) * 4

    L = g.L
    L.append(HEADER.rstrip('\n'))
    L.append(f'; @launch grid=(256,1,1) block=({NW*64},1,1) lds={LDS}')
    L.append('.amdgcn_target "amdgcn-amd-amdhsa--gfx950"')
    L.append('.text')
    L.append(f'.globl {KN}')
    L.append('.p2align 8')
    L.append(f'.type {KN},@function')
    g.lab(KN)
    A('s_cmp_ge_u32 s2, 256')
    A('s_cbranch_scc1 L_done')
    A('s_load_dwordx16 s[4:19], s[0:1], 0')
    if stamp:
        A(f's_memrealtime s[{sST0}:{sST0+1}]')
    A(f's_lshr_b32 s{sB}, s2, 4')
    A(f's_and_b32 s{sH}, s2, 15')
    A('v_lshrrev_b32 v1, 6, v0')
    A('v_and_b32 v0, 63, v0')
    A(f'v_readfirstlane_b32 s{sW}, v1')
    C('u = lane>>4 (v2), c = lane&15 (v3)')
    A('v_lshrrev_b32 v2, 4, v0')
    A('v_and_b32 v3, 15, v0')
    A(f'v_lshlrev_b32 v{V4U}, 2, v2')
    A(f's_mov_b32 s{sC}, {hex(f32bits(math.log2(math.e) / math.sqrt(128.0)))}')
    A(f's_lshl_b32 s{sRING}, s{sW}, 15')
    A(f's_lshl_b32 s{sT0}, s{sH}, 8')
    C('DMA voffsets: row rho=4i+u, chunk c ^ (2*(rho&7)); minus 1024*i (imm offset re-adds it)')
    for i in range(4):
        A(f'v_add_u32 v4, {4*i}, v2')
        A('v_and_b32 v5, 7, v4')
        A('v_lshlrev_b32 v5, 1, v5')
        A('v_xor_b32 v5, v5, v3')
        A('v_lshlrev_b32 v4, 12, v4')
        A('v_lshl_add_u32 v4, v5, 4, v4')
        A(f'v_add_u32 v4, s{sT0}, v4')
        if i:
            A(f'v_subrev_u32 v{VOFF+i}, {1024*i}, v4')
        else:
            A(f'v_mov_b32 v{VOFF}, v4')
    C('K fragment read addresses: m*256 + (((4s+u) ^ (2*(m&7)))<<4) + ring')
    A('v_and_b32 v5, 7, v3')
    A('v_lshlrev_b32 v5, 1, v5')
    A('v_lshlrev_b32 v6, 8, v3')
    A(f'v_add_u32 v6, s{sRING}, v6')
    for s in range(4):
        A(f'v_add_u32 v4, {4*s}, v2')
        A('v_xor_b32 v4, v4, v5')
        A(f'v_lshl_add_u32 v{AK+s}, v4, 4, v6')
    C('V transposed read addresses: key=4u+r, chunk=(2j+(c4>>1)) ^ (2*(key&7)), half=c4&1')
    A('v_bfe_u32 v4, v0, 2, 2')
    A(f'v_add_u32 v4, v{V4U}, v4')
    A('v_and_b32 v5, 7, v4')
    A('v_lshlrev_b32 v5, 1, v5')
    A('v_lshlrev_b32 v6, 8, v4')
    A(f'v_add_u32 v6, s{sRING}, v6')
    A('v_and_b32 v7, 1, v0')
    A('v_lshl_add_u32 v6, v7, 3, v6')
    A('v_bfe_u32 v7, v0, 1, 1')
    for j in range(8):
        A(f'v_add_u32 v4, {2*j}, v7')
        A('v_xor_b32 v4, v4, v5')
        A(f'v_lshl_add_u32 v{AV+j}, v4, 4, v6')
    A('s_waitcnt lgkmcnt(0)')
    A(f's_lshl_b32 s{sT1}, s{sB}, 2')
    A(f's_load_dword s{sCTXV}, s[{sCTX}:{sCTX+1}], s{sT1}')
    for S_, ptr, nb in ((SRD_BT, sBT, 16384), (SRD_K, sK, KV_BYTES), (SRD_V, sV, KV_BYTES), (SRD_Q, sQ, 2097152), (SRD_O, sOUT, 2097152), (SRD_WS, sWS, 1074790400)):
        A(f's_mov_b32 s{S_}, s{ptr}')
        A(f's_and_b32 s{S_+1}, s{ptr+1}, 0xffff')
        A(f's_mov_b32 s{S_+2}, {nb}')
        A(f's_mov_b32 s{S_+3}, 0x20000')
    C('block-table gathers: lane k -> pages pa = w + 8k, pb = pa + 4')
    A('v_lshlrev_b32 v1, 3, v0')
    A(f'v_add_u32 v1, s{sW}, v1')
    A('v_lshlrev_b32 v4, 2, v1')
    A('v_mov_b32 v5, 0x7fff0000')
    A('v_cmp_gt_u32 vcc, 32, v0')
    A(f's_lshl_b32 s{sT1}, s{sB}, 10')
    A('s_nop 0')
    A('v_cndmask_b32 v4, v5, v4, vcc')
    A(f'buffer_load_dword v{LIST0}, v4, {srd(SRD_BT)}, s{sT1} offen')
    A(f'buffer_load_dword v{LIST1}, v4, {srd(SRD_BT)}, s{sT1} offen offset:16')
    C('Q fragments')
    A('v_lshlrev_b32 v4, 8, v3')
    A('v_lshl_add_u32 v4, v2, 4, v4')
    A(f's_lshl_b32 s{sT1}, s{sB}, 5')
    A(f's_lshl_b32 s{sT2}, s{sH}, 1')
    A(f's_add_u32 s{sT1}, s{sT1}, s{sT2}')
    A(f's_lshl_b32 s{sT1}, s{sT1}, 12')
    A(f's_add_u32 s{sT2}, s{sT1}, 4096')
    for gg in range(2):
        for s in range(4):
            A(f'buffer_load_dwordx4 {vr(q_(gg, s), 4)}, v4, {srd(SRD_Q)}, s{sT1 if gg == 0 else sT2} offen offset:{s*64}')
    C('init accumulators')
    for i in range(64):
        A(f'v_mov_b32 v{O+i}, 0')
    A(f'v_mov_b32 v{MRUN}, 0xff800000')
    A(f'v_mov_b32 v{L0}, 0')
    A(f'v_mov_b32 v{L1}, 0')
    A('s_waitcnt lgkmcnt(0)')
    C('ctx_eff: <=0 -> 4096 with Q zeroed; >4096 -> 4096')
    A(f's_min_i32 s{sT0}, s{sCTXV}, 4096')
    A(f's_cmp_lt_i32 s{sCTXV}, 1')
    A(f's_cselect_b32 s{sCTXV}, 4096, s{sT0}')
    A(f's_cselect_b32 s{sT2}, 1, 0')
    A(f's_add_u32 s{sNP}, s{sCTXV}, 15')
    A(f's_lshr_b32 s{sNP}, s{sNP}, 4')
    A(f's_add_u32 s{sREM}, s{sNP}, 7')
    A(f's_lshr_b32 s{sREM}, s{sREM}, 3')
    C('valid counts')
    A('v_lshlrev_b32 v4, 4, v1')
    A(f'v_sub_u32 v4, s{sCTXV}, v4')
    A('v_subrev_u32 v5, 64, v4')
    A('v_med3_i32 v4, v4, 0, 16')
    A('v_med3_i32 v5, v5, 0, 16')
    A(f'v_lshl_or_b32 v{LISTV}, v5, 8, v4')
    A('v_mov_b32 v6, 4100')
    A('s_waitcnt vmcnt(8)')
    A('v_cmp_lt_i32 vcc, 0, v4')
    A('s_nop 1')
    A(f'v_cndmask_b32 v{LIST0}, v6, v{LIST0}, vcc')
    A('v_cmp_lt_i32 vcc, 0, v5')
    A('s_nop 1')
    A(f'v_cndmask_b32 v{LIST1}, v6, v{LIST1}, vcc')
    A(f'v_lshlrev_b32 v{LIST0}, 16, v{LIST0}')
    A(f'v_lshlrev_b32 v{LIST1}, 16, v{LIST1}')
    A('s_nop 0')
    A(f'v_readlane_b32 s{sP0}, v{LIST0}, 0')
    A(f'v_readlane_b32 s{sP1}, v{LIST1}, 0')
    A(f's_mov_b32 s{sNEXT}, s{sRING}')
    A(f's_mov_b32 s{sK1}, 1')
    A('s_nop 2')

    def dma(part, i):
        S_ = SRD_K if part < 2 else SRD_V
        so = sP0 if part % 2 == 0 else sP1
        off = f' offset:{1024*i}' if i else ''
        A(f'buffer_load_dwordx4 v{VOFF+i}, {srd(S_)}, s{so} offen{off} nt lds')
    def setm0(part):
        if part == 0:
            A(f's_mov_b32 m0, s{sNEXT}')
        else:
            A(f's_add_u32 m0, s{sNEXT}, {part*4096}')
    C('tile 0 loads')
    for part in range(4):
        setm0(part)
        A('s_nop 0')
        for i in range(4):
            dma(part, i)
    A(f's_xor_b32 s{sNEXT}, s{sNEXT}, 0x4000')
    C('zero-Q rare path (ctx <= 0: uniform softmax over all keys)')
    A(f's_cmp_eq_u32 s{sT2}, 0')
    A('s_cbranch_scc1 L_loop')
    A('s_waitcnt vmcnt(16)')
    for i in range(32):
        A(f'v_mov_b32 v{Q+i}, 0')

    def slot(j, need=None):
        part = j // 2
        if j % 2 == 0:
            setm0(part)
        w = CAP - 2
        if need is not None:
            w = min(w, need)
        A(f's_waitcnt vmcnt({w})')
        if j % 2 == 0:
            dma(part, 0); dma(part, 1)
        else:
            dma(part, 2); dma(part, 3)

    L.append('.p2align 6')
    g.lab('L_loop')
    A(f'v_readlane_b32 s{sP0}, v{LIST0}, s{sK1}')
    A(f'v_readlane_b32 s{sP1}, v{LIST1}, s{sK1}')
    A(f's_sub_u32 s{sT0}, s{sK1}, 1')
    A(f'v_readlane_b32 s{sVC}, v{LISTV}, s{sT0}')
    A(f's_add_u32 s{sK1}, s{sK1}, 1')
    setm0(0)
    A(f's_waitcnt vmcnt({min(CAP-2, 8)})')
    for p in range(2):
        for s in range(4):
            off = f' offset:{p*4096}' if p else ''
            A(f'ds_read_b128 {vr(kf_(p, s), 4)}, v{AK+s}{off}')
    dma(0, 0); dma(0, 1)
    for s in range(4):
        A(f's_waitcnt lgkmcnt({7-s})')
        for gg in range(2):
            c = '0' if s == 0 else vr(s_(0, gg), 4)
            A(f'v_mfma_f32_16x16x32_bf16 {vr(s_(0, gg), 4)}, {vr(kf_(0, s), 4)}, {vr(q_(gg, s), 4)}, {c}')
    slot(1)
    for s in range(4):
        A(f's_waitcnt lgkmcnt({3-s})')
        for gg in range(2):
            c = '0' if s == 0 else vr(s_(1, gg), 4)
            A(f'v_mfma_f32_16x16x32_bf16 {vr(s_(1, gg), 4)}, {vr(kf_(1, s), 4)}, {vr(q_(gg, s), 4)}, {c}')
    slot(2)
    A('s_nop 3')
    A(f's_cmp_eq_u32 s{sVC}, 0x1010')
    A('s_cbranch_scc1 L_nomask')
    C('masked tile: keys >= valid count get a huge negative score')
    A(f'v_mov_b32 v1, 0xf149f2ca')
    for p in range(2):
        if p == 0:
            A(f's_and_b32 s{sT0}, s{sVC}, 0xff')
        else:
            A(f's_lshr_b32 s{sT0}, s{sVC}, 8')
        for r in range(4):
            A(f's_sub_i32 s{sT1}, s{sT0}, {r}')
            A(f'v_cmp_gt_i32 vcc, s{sT1}, v{V4U}')
            A('s_nop 1')
            for gg in range(2):
                A(f'v_cndmask_b32 v{s_(p, gg)+r}, v1, v{s_(p, gg)+r}, vcc')
    g.lab('L_nomask')
    for gg, T in ((0, T0), (1, T1)):
        a, b = s_(0, gg), s_(1, gg)
        A(f'v_max3_f32 v{T}, v{a}, v{a+1}, v{a+2}')
    for gg, T in ((0, T0), (1, T1)):
        a, b = s_(0, gg), s_(1, gg)
        A(f'v_max3_f32 v{T}, v{T}, v{a+3}, v{b}')
    for gg, T in ((0, T0), (1, T1)):
        a, b = s_(0, gg), s_(1, gg)
        A(f'v_max3_f32 v{T}, v{T}, v{b+1}, v{b+2}')
    for gg, T in ((0, T0), (1, T1)):
        a, b = s_(0, gg), s_(1, gg)
        A(f'v_max_f32 v{T}, v{T}, v{b+3}')
    A('s_nop 1')
    A(f'v_permlane32_swap_b32 v{T0}, v{T1}')
    A('s_nop 0')
    A(f'v_max_f32 v{Y}, v{T0}, v{T1}')
    A(f'v_max_f32 v{AA}, v{T0}, v{T1}')
    A('s_nop 1')
    A(f'v_permlane16_swap_b32 v{AA}, v{Y}')
    A('s_nop 0')
    A(f'v_max_f32 v{Y}, v{AA}, v{Y}')
    A(f'v_mul_f32 v{Y}, s{sC}, v{Y}')
    A(f'v_max_f32 v{M0B}, v{MRUN}, v{Y}')
    A(f'v_max_f32 v{M1B}, v{MRUN}, v{Y}')
    A(f'v_cmp_gt_f32 vcc, v{M0B}, v{MRUN}')
    A(f'v_sub_f32 v{ALPHA}, v{MRUN}, v{M0B}')
    A(f'v_mov_b32 v{MRUN}, v{M0B}')
    A(f'v_permlane32_swap_b32 v{M0B}, v{M1B}')
    A('s_cbranch_vccz L_norescale')
    A(f'v_exp_f32 v{A0B}, v{ALPHA}')
    A(f'v_exp_f32 v{A1B}, v{ALPHA}')
    A('s_nop 1')
    A(f'v_permlane32_swap_b32 v{A0B}, v{A1B}')
    A('s_nop 0')
    A(f'v_mul_f32 v{L0}, v{L0}, v{A0B}')
    A(f'v_mul_f32 v{L1}, v{L1}, v{A1B}')
    for gg, AB in ((0, A0B), (1, A1B)):
        for i in range(32):
            A(f'v_mul_f32 v{O+gg*32+i}, v{O+gg*32+i}, v{AB}')
    g.lab('L_norescale')
    slot(3)
    for p in range(2):
        for gg, MB in ((0, M0B), (1, M1B)):
            for r in range(4):
                x = s_(p, gg) + r
                A(f'v_fma_f32 v{x}, v{x}, s{sC}, -v{MB}')
    for p in range(2):
        for gg in range(2):
            for r in range(4):
                x = s_(p, gg) + r
                A(f'v_exp_f32 v{x}, v{x}')
    slot(4, need=8)
    def vread(j):
        for p in range(2):
            A(f'ds_read_b64_tr_b16 {vr(vf_(j)+2*p, 2)}, v{AV+j} offset:{8192+p*4096}')
    for j in range(4):
        vread(j)
    for gg in range(2):
        for p in range(2):
            a = s_(p, gg)
            A(f'v_cvt_pk_bf16_f32 v{p_(gg)+2*p}, v{a}, v{a+1}')
            A(f'v_cvt_pk_bf16_f32 v{p_(gg)+2*p+1}, v{a+2}, v{a+3}')
    for gg, LL in ((0, L0), (1, L1)):
        a, b = s_(0, gg), s_(1, gg)
        A(f'v_add_f32 v{a}, v{a}, v{a+1}')
        A(f'v_add_f32 v{a+2}, v{a+2}, v{a+3}')
        A(f'v_add_f32 v{b}, v{b}, v{b+1}')
        A(f'v_add_f32 v{b+2}, v{b+2}, v{b+3}')
        A(f'v_add_f32 v{a}, v{a}, v{a+2}')
        A(f'v_add_f32 v{b}, v{b}, v{b+2}')
        A(f'v_add_f32 v{LL}, v{LL}, v{a}')
        A(f'v_add_f32 v{LL}, v{LL}, v{b}')
    def pv(j):
        for gg in range(2):
            A(f'v_mfma_f32_16x16x32_bf16 {vr(o_(gg, j), 4)}, {vr(vf_(j), 4)}, {vr(p_(gg), 4)}, {vr(o_(gg, j), 4)}')
    A('s_waitcnt lgkmcnt(6)'); pv(0)
    A('s_waitcnt lgkmcnt(4)'); pv(1)
    vread(4); vread(5)
    slot(5)
    A('s_waitcnt lgkmcnt(6)'); pv(2)
    A('s_waitcnt lgkmcnt(4)'); pv(3)
    vread(6); vread(7)
    slot(6)
    A('s_waitcnt lgkmcnt(6)'); pv(4)
    A('s_waitcnt lgkmcnt(4)'); pv(5)
    slot(7)
    A('s_waitcnt lgkmcnt(2)'); pv(6)
    A('s_waitcnt lgkmcnt(0)'); pv(7)
    for i in range(4):
        A(f'v_xor_b32 v{AK+i}, 0x4000, v{AK+i}')
    for i in range(8):
        A(f'v_xor_b32 v{AV+i}, 0x4000, v{AV+i}')
    A(f's_xor_b32 s{sNEXT}, s{sNEXT}, 0x4000')
    A(f's_sub_u32 s{sREM}, s{sREM}, 1')
    A(f's_cmp_lg_u32 s{sREM}, 0')
    A('s_cbranch_scc1 L_loop')

    C('---- epilogue: merge the 4 waves through LDS.  Free slot = sNEXT (the tile just consumed)')
    A(f'v_permlane32_swap_b32 v{L0}, v{L1}')
    A('s_nop 0')
    A(f'v_add_f32 v{Y}, v{L0}, v{L1}')
    A(f'v_add_f32 v{AA}, v{L0}, v{L1}')
    A('s_nop 1')
    A(f'v_permlane16_swap_b32 v{AA}, v{Y}')
    A('s_nop 0')
    A(f'v_add_f32 v5, v{AA}, v{Y}')
    A(f'v_mov_b32 v4, v{MRUN}')
    A(f's_lshl_b32 s{sT0}, s{sW}, 9')
    A(f's_add_u32 s{sT0}, s{sT0}, {MAIL}')
    A('v_lshlrev_b32 v1, 3, v0')
    A(f'v_add_u32 v1, s{sT0}, v1')
    A('ds_write_b64 v1, v[4:5]')
    A('v_lshlrev_b32 v2, 4, v0')
    A(f'v_add_u32 v1, s{sNEXT}, v2')
    for d in range(4):
        for jj in range(4):
            A(f'ds_write_b128 v1, {vr(o_(d//2, 4*(d%2)+jj), 4)} offset:{d*4096+jj*1024}')
    C('read addresses: stats (g*32+q)*8 ; slices parity + w*4096 + lane*16')
    A(f's_lshr_b32 s{sT0}, s{sW}, 1')
    A(f's_lshl_b32 s{sT0}, s{sT0}, 8')
    A(f's_add_u32 s{sT0}, s{sT0}, {MAIL}')
    A('v_and_b32 v3, 15, v0')
    A('v_lshlrev_b32 v1, 3, v3')
    A(f'v_add_u32 v1, s{sT0}, v1')
    A(f's_and_b32 s{sT0}, s{sNEXT}, 0x4000')
    A(f's_lshl_b32 s{sT1}, s{sW}, 12')
    A(f's_add_u32 s{sT0}, s{sT0}, s{sT1}')
    A(f'v_add_u32 v2, s{sT0}, v2')
    A(f'v_add_u32 v6, 0x10000, v2')
    A('s_waitcnt lgkmcnt(0)')
    A('s_barrier')
    ST = KF
    for w in range(4):
        A(f'ds_read_b64 {vr(ST+2*w, 2)}, v1 offset:{w*512}')
    for w in range(4):
        for jj in range(4):
            base = 'v2' if w < 2 else 'v6'
            A(f'ds_read_b128 {vr(O+w*16+jj*4, 4)}, {base} offset:{(w%2)*RING+jj*1024}')
    C('output address')
    A(f's_lshl_b32 s{sT0}, s{sB}, 5')
    A(f's_lshl_b32 s{sT1}, s{sH}, 1')
    A(f's_add_u32 s{sT0}, s{sT0}, s{sT1}')
    A(f's_lshr_b32 s{sT1}, s{sW}, 1')
    A(f's_add_u32 s{sT0}, s{sT0}, s{sT1}')
    A(f's_lshl_b32 s{sT0}, s{sT0}, 12')
    A(f's_and_b32 s{sT1}, s{sW}, 1')
    A(f's_lshl_b32 s{sT1}, s{sT1}, 7')
    A(f's_add_u32 s{sT0}, s{sT0}, s{sT1}')
    A('v_lshlrev_b32 v3, 8, v3')
    A(f'v_lshl_add_u32 v3, v{V4U}, 1, v3')
    A('s_waitcnt lgkmcnt(15)')
    A('s_waitcnt lgkmcnt(15)')
    F = ST + 8
    A(f'v_max_f32 v4, v{ST}, v{ST+2}')
    A(f'v_max3_f32 v4, v4, v{ST+4}, v{ST+6}')
    for w in range(4):
        A(f'v_sub_f32 v{F+w}, v{ST+2*w}, v4')
    for w in range(4):
        A(f'v_exp_f32 v{F+w}, v{F+w}')
    A('s_nop 0')
    A(f'v_mul_f32 v5, v{F}, v{ST+1}')
    for w in range(1, 4):
        A(f'v_fmac_f32 v5, v{F+w}, v{ST+2*w+1}')
    A('v_rcp_f32 v5, v5')
    A('s_nop 0')
    for w in range(4):
        A(f'v_mul_f32 v{F+w}, v{F+w}, v5')
    A('s_waitcnt lgkmcnt(8)')
    for i in range(16):
        A(f'v_mul_f32 v{O+i}, v{O+i}, v{F}')
    for i in range(16):
        A(f'v_fmac_f32 v{O+i}, v{O+16+i}, v{F+1}')
    A('s_waitcnt lgkmcnt(0)')
    for i in range(16):
        A(f'v_fmac_f32 v{O+i}, v{O+32+i}, v{F+2}')
    for i in range(16):
        A(f'v_fmac_f32 v{O+i}, v{O+48+i}, v{F+3}')
    for jj in range(4):
        A(f'v_cvt_pk_bf16_f32 v{S+2*jj}, v{O+4*jj}, v{O+4*jj+1}')
        A(f'v_cvt_pk_bf16_f32 v{S+2*jj+1}, v{O+4*jj+2}, v{O+4*jj+3}')
        A(f'buffer_store_dwordx2 {vr(S+2*jj, 2)}, v3, {srd(SRD_O)}, s{sT0} offen offset:{jj*32}')
    if stamp:
        A('s_waitcnt vmcnt(0)')
        A(f's_memrealtime s[{sST0+2}:{sST0+3}]')
        A('s_getreg_b32 s72, hwreg(HW_REG_XCC_ID)')
        A('s_waitcnt lgkmcnt(0)')
        A(f'v_mov_b32 v4, s{sST0}'); A(f'v_mov_b32 v5, s{sST0+2}'); A('v_mov_b32 v6, s72'); A('v_mov_b32 v7, 0')
        A(f's_lshl_b32 s73, s2, 2'); A(f's_add_u32 s73, s73, s{sW}'); A('s_lshl_b32 s73, s73, 4')
        A('v_mov_b32 v1, 0')
        A('v_cmp_eq_u32 vcc, 0, v0')
        A('s_and_saveexec_b64 s[74:75], vcc')
        A(f'buffer_store_dwordx4 v[4:7], v1, {srd(SRD_WS)}, s73 offen')
    g.lab('L_done')
    A('s_endpgm')
    nv = g.nv
    acc = (nv + 3) // 4 * 4
    L.append('.section .rodata,"a"')
    L.append('.p2align 6')
    L.append(f'.amdhsa_kernel {KN}')
    L.append(f'  .amdhsa_next_free_vgpr {nv}')
    L.append('  .amdhsa_next_free_sgpr 96')
    L.append(f'  .amdhsa_accum_offset {acc}')
    L.append('  .amdhsa_group_segment_fixed_size 0')
    L.append('  .amdhsa_kernarg_size 64')
    L.append('  .amdhsa_user_sgpr_count 2')
    L.append('  .amdhsa_user_sgpr_kernarg_segment_ptr 1')
    L.append('  .amdhsa_system_sgpr_workgroup_id_x 1')
    L.append('.end_amdhsa_kernel')
    return '\n'.join(L) + '\n'

if __name__ == '__main__':
    for cap in (4, 6, 8, 10):
        open(f'v1_c{cap}.s', 'w').write(gen(CAP=cap, stamp=True))
    open('v1.s', 'w').write(gen(CAP=6))
```
